```python
import torch

def _softmax(x, axis=-1):
    return torch.softmax(x, dim=axis)
def _gelu(x):
    return torch.nn.functional.gelu(x, approximate="tanh")
def _silu(x):
    return torch.nn.functional.silu(x)
def _sigmoid(x):
    return torch.sigmoid(x)
def _layernorm(x, axis=-1, eps=1e-5):
    m = x.mean(dim=axis, keepdim=True)
    v = x.var(dim=axis, keepdim=True, unbiased=False)
    return (x - m) / torch.sqrt(v + eps)
def _scatter_add(tgt, idx, src, axis=0):
    return tgt.clone().index_add_(axis, idx, src)
def _segment_sum(src, seg, n):
    out = torch.zeros((n,) + src.shape[1:], dtype=src.dtype)
    return out.index_add_(0, seg, src)
def _pad(x, pw):
    flat = tuple(v for pair in reversed(pw) for v in pair)
    return torch.nn.functional.pad(x, flat)

kernel_name = 'standalone__mha_softmax__near_ridge'

def setup_inputs():

    _w = (lambda a: (lambda t: t.to(torch.bfloat16) if t.is_floating_point() else t)(torch.as_tensor(a)))
    B, H, Sq, Sk, D = 8, 32, 384, 2048, 128
    return {
        "q": _w((lambda *s: torch.randn(*s, dtype=torch.bfloat16) * 0.8)(B, H, Sq, D)),
        "k": _w((lambda *s: torch.randn(*s, dtype=torch.bfloat16) * 0.8)(B, H, Sk, D)),
        "v": _w((lambda *s: torch.randn(*s, dtype=torch.bfloat16) * 0.05)(B, H, Sk, D)),
    }

def reference(q, k, v):
    scale = q.shape[-1] ** -0.5
    scores = torch.einsum("bhqd,bhkd->bhqk", q, k) * scale
    p = _softmax(scores, axis=-1)
    return torch.einsum("bhqk,bhkd->bhqd", p, v)
```

```python
import subprocess, os

def kernel_text(name, body_lines, iters, nvgpr, accum, pre_lines=(), block=256, inload=True):
    t = []
    t.append(f".text\n.globl {name}\n.p2align 8\n.type {name},@function\n{name}:")
    t.append("""
    s_load_dwordx2 s[4:5], s[0:1], 0
    s_load_dwordx2 s[6:7], s[0:1], 8
    v_lshrrev_b32 v1, 6, v0
    s_nop 1
    v_readfirstlane_b32 s30, v1
    v_and_b32 v2, 63, v0                 ; lane
    s_waitcnt lgkmcnt(0)
    s_mov_b32 s24, s4
    s_and_b32 s25, s5, 0xffff
    s_mov_b32 s26, 0x10000000
    s_mov_b32 s27, 0x20000
""")
    t += list(pre_lines)
    t.append("""
    s_waitcnt vmcnt(0) lgkmcnt(0)
    s_barrier
    s_memtime s[8:9]
    s_memrealtime s[10:11]
    s_waitcnt lgkmcnt(0)
    s_mov_b32 s20, %d
    .p2align 6
%s_loop:""" % (iters, name))
    t += ["    " + l for l in body_lines]
    t.append(f"""
    s_sub_u32 s20, s20, 1
    s_cmp_lg_u32 s20, 0
    s_cbranch_scc1 {name}_loop
    s_waitcnt vmcnt(0) lgkmcnt(0)
    s_memtime s[12:13]
    s_memrealtime s[14:15]
    s_waitcnt lgkmcnt(0)
    s_sub_u32 s12, s12, s8
    s_sub_u32 s14, s14, s10
    s_mul_i32 s16, s2, {block//64}
    s_add_u32 s16, s16, s30
    s_lshl_b32 s16, s16, 3
    v_mov_b32 v4, s12
    v_mov_b32 v5, s14
    v_mov_b32 v6, s16
    v_and_b32 v2, 63, v0
    v_cmp_eq_u32 vcc, 0, v2
    s_and_saveexec_b64 s[18:19], vcc
    global_store_dwordx2 v6, v[4:5], s[6:7]
    s_waitcnt vmcnt(0)
    s_endpgm
""")
    kd = f""".section .rodata,"a"
.p2align 6
.amdhsa_kernel {name}
  .amdhsa_next_free_vgpr {nvgpr}
  .amdhsa_next_free_sgpr 96
  .amdhsa_accum_offset {accum}
  .amdhsa_group_segment_fixed_size 0
  .amdhsa_kernarg_size 16
  .amdhsa_user_sgpr_count 2
  .amdhsa_user_sgpr_kernarg_segment_ptr 1
  .amdhsa_system_sgpr_workgroup_id_x 1
.end_amdhsa_kernel
"""
    md = f"""  - .name: {name}
    .symbol: {name}.kd
    .kernarg_segment_size: 16
    .kernarg_segment_align: 8
    .group_segment_fixed_size: 0
    .private_segment_fixed_size: 0
    .wavefront_size: 64
    .sgpr_count: 96
    .vgpr_count: {nvgpr}
    .max_flat_workgroup_size: {block}
    .args:
      - {{.name: kernargs, .size: 16, .offset: 0, .value_kind: by_value}}
"""
    return "\n".join(t), kd, md

def build(fname, kernels):
    s = '.amdgcn_target "amdgcn-amd-amdhsa--gfx950"\n'
    for t, kd, md in kernels:
        s += t + "\n"
    for t, kd, md in kernels:
        s += kd
    s += ".amdgpu_metadata\n---\namdhsa.version: [1, 2]\namdhsa.kernels:\n"
    for t, kd, md in kernels:
        s += md
    s += "...\n.end_amdgpu_metadata\n"
    open(fname + ".s", "w").write(s)
    r = subprocess.run(["clang", "-x", "assembler", "-target", "amdgcn-amd-amdhsa", "-mcpu=gfx950", fname + ".s", "-o", fname + ".co"], capture_output=True, text=True)
    if r.returncode:
        print(r.stderr[:4000])
        raise SystemExit(1)
```

```python
from mblib import *
kernels=[]; specs=[]
def add(name, mask_expr):
    pre=["v_and_b32 v2, 63, v0","v_lshlrev_b32 v164, 4, v2",
         "s_mul_i32 s28, s2, 98304","s_mul_i32 s33, s30, 24576","s_add_u32 s28, s28, s33", "s_mul_i32 s34, s30, 24576", "s_mov_b32 m0, s34",
         "s_getreg_b32 s44, hwreg(HW_REG_XCC_ID, 0, 4)"] + mask_expr
    out=[f"s_cbranch_scc0 {name}_skip"]
    for j in range(6):
        out.append(f"s_add_u32 s29, s28, {j*4096}")
        out.append(f"s_add_u32 m0, s34, {j*4096}")
        out.append("s_nop 0")
        for s in range(4):
            out.append(f"buffer_load_dwordx4 v164, s[24:27], s29 offen offset:{1024*s} nt lds")
    out.append("s_waitcnt vmcnt(0)")
    out.append(f"{name}_skip:")
    t = kernel_text(name, out, 1, 512, 256, pre_lines=pre, block=256)
    txt=t[0].replace("s_mov_b32 s20, 1\n","s_mov_b32 s20, 1\n    s_cmp_eq_u32 s45, 1\n")
    kernels.append((txt,t[1],t[2])); specs.append(f"{name} 256 256 102400 1")
add("all8", ["s_mov_b32 s45, 1"])
add("x4", ["s_cmp_lt_u32 s44, 4","s_cselect_b32 s45, 1, 0"])
add("x2", ["s_cmp_lt_u32 s44, 2","s_cselect_b32 s45, 1, 0"])
add("x1", ["s_cmp_lt_u32 s44, 1","s_cselect_b32 s45, 1, 0"])
add("odd", ["s_and_b32 s44, s44, 1","s_cmp_eq_u32 s44, 1","s_cselect_b32 s45, 1, 0"])
build("mb16", kernels)
open("mb16.args","w").write(" ".join(specs))
```
